```python
import torch

def _softmax(x, axis=-1):
    return torch.softmax(x, dim=axis)
def _gelu(x):
    return torch.nn.functional.gelu(x, approximate="tanh")
def _silu(x):
    return torch.nn.functional.silu(x)
def _sigmoid(x):
    return torch.sigmoid(x)
def _layernorm(x, axis=-1, eps=1e-5):
    m = x.mean(dim=axis, keepdim=True)
    v = x.var(dim=axis, keepdim=True, unbiased=False)
    return (x - m) / torch.sqrt(v + eps)
def _scatter_add(tgt, idx, src, axis=0):
    return tgt.clone().index_add_(axis, idx, src)
def _segment_sum(src, seg, n):
    out = torch.zeros((n,) + src.shape[1:], dtype=src.dtype)
    return out.index_add_(0, seg, src)
def _pad(x, pw):
    flat = tuple(v for pair in reversed(pw) for v in pair)
    return torch.nn.functional.pad(x, flat)

kernel_name = 'interleave_layers__sliding_local_dilated__dense_activation_gelu__prompt'

def setup_inputs():

    _w = (lambda a: (lambda t: t.to(torch.bfloat16) if t.is_floating_point() else t)(torch.as_tensor(a)))
    def _A_setup():
        B, S, D = 1, 2048, 576
        return {
            "x": _w((lambda *s: torch.randn(*s, dtype=torch.bfloat16) * 0.05)(B, S, D)),
            "wqkv": _w((lambda *s: torch.randn(*s, dtype=torch.bfloat16) * 0.05)(D, 3 * D)),
            "wo": _w((lambda *s: torch.randn(*s, dtype=torch.bfloat16) * 0.05)(D, D)),
        }
    _A_in = _A_setup()

    def _B_setup():
        B, S, D, F = 1, 2048, 576, 4608
        return {
            "x": _w((lambda *s: torch.randn(*s, dtype=torch.bfloat16) * 0.05)(B, S, D)),
            "w1": _w((lambda *s: torch.randn(*s, dtype=torch.bfloat16) * 0.8)(D, F) * (D ** -0.5)),
            "b1": _w((lambda *s: torch.randn(*s, dtype=torch.bfloat16) * 0.8)(F) * 0.01),
            "w2": _w((lambda *s: torch.randn(*s, dtype=torch.bfloat16) * 0.8)(F, D) * (F ** -0.5)),
            "b2": _w((lambda *s: torch.randn(*s, dtype=torch.bfloat16) * 0.8)(D) * 0.01),
        }
    _B_in = _B_setup()

    return {
        "A_x": _A_in["x"],
        "A_wqkv": _A_in["wqkv"],
        "A_wo": _A_in["wo"],
        "B_x": _B_in["x"],
        "B_w1": _B_in["w1"],
        "B_b1": _B_in["b1"],
        "B_w2": _B_in["w2"],
        "B_b2": _B_in["b2"],
    }

def reference(A_x, A_wqkv, A_wo, B_x, B_w1, B_b1, B_w2, B_b2):
    def _A_ref(x, wqkv, wo):
        B, S, D = x.shape
        H = 32; Dh = D // H
        W, dil = 8, 2
        qkv = (lambda x, *d: x.permute(*d))((x @ wqkv).reshape(B, S, 3, H, Dh), 2, 0, 3, 1, 4)
        q, k, v = qkv[0], qkv[1], qkv[2]
        scale = Dh ** -0.5
        pos = torch.arange(S)
        off = torch.arange(W) * dil
        idx = pos[:, None] - off[None, :]
        mask = idx >= 0
        idx_c = torch.where(mask, idx, 0).reshape(-1)
        kg = k[:, :, idx_c, :].reshape(B, H, S, W, Dh)
        vg = v[:, :, idx_c, :].reshape(B, H, S, W, Dh)
        logits = torch.einsum("bhsd,bhswd->bhsw", q, kg) * scale
        logits = torch.where(mask[None, None, :, :], logits, -1e9)
        attn = _softmax(logits, axis=-1)
        o = torch.einsum("bhsw,bhswd->bhsd", attn, vg)
        return (lambda x, *d: x.permute(*d))(o, 0, 2, 1, 3).reshape(B, S, D) @ wo

    def _B_ref(x, w1, b1, w2, b2):
        h = torch.einsum("bsd,df->bsf", x, w1) + b1
        h = _gelu(h)
        return torch.einsum("bsf,fd->bsd", h, w2) + b2

    x = A_x
    x = x + _A_ref(_layernorm(x, axis=-1), A_wqkv, A_wo)
    x = x + _B_ref(_layernorm(x, axis=-1), B_w1, B_b1, B_w2, B_b2)
    x = x + _A_ref(_layernorm(x, axis=-1), A_wqkv, A_wo)
    x = x + _B_ref(_layernorm(x, axis=-1), B_w1, B_b1, B_w2, B_b2)
    return x
```

```python
import re

REG_RE = re.compile(r'\b([vas])(\d+)\b|\b([vas])\[(\d+):(\d+)\]|\b(vcc|exec|m0|scc)\b')

def regs_of(tok):
    out = []
    for m in REG_RE.finditer(tok):
        if m.group(1):
            out.append((m.group(1), int(m.group(2))))
        elif m.group(3):
            for i in range(int(m.group(4)), int(m.group(5)) + 1):
                out.append((m.group(3), i))
        else:
            out.append((m.group(6), 0))
    return out

TRANS = ('v_exp_f32', 'v_log_f32', 'v_rcp_f32', 'v_rsq_f32', 'v_sqrt_f32', 'v_sin_f32', 'v_cos_f32')

class Ins:
    __slots__ = ('text', 'op', 'kind', 'rd', 'wr', 'passes', 'srcc', 'dpp')
    def __init__(self, text):
        self.text = text
        t = text.split(';')[0].strip()
        self.op = t.split()[0] if t else ''
        self.rd = set(); self.wr = set(); self.passes = 0; self.srcc = set(); self.dpp = False
        op = self.op
        rest = t[len(op):].strip()
        ops = [x.strip() for x in rest.split(',')] if rest else []
        if not t or t.endswith(':') or op.startswith('.'):
            self.kind = 'label' if t.endswith(':') else 'none'
            return
        if op.startswith('v_mfma'):
            self.kind = 'mfma'
            self.passes = 8 if '32x32x16' in op else 4
            self.wr = set(regs_of(ops[0]))
            self.rd = set(regs_of(ops[1])) | set(regs_of(ops[2]))
            self.srcc = set(regs_of(ops[3]))
        elif op.startswith('v_cmp'):
            self.kind = 'valu'
            self.wr = set(regs_of(ops[0]))
            for o in ops[1:]: self.rd |= set(regs_of(o))
        elif op.startswith('v_permlane') and 'swap' in op:
            self.kind = 'permlane'
            self.wr = set(regs_of(ops[0])) | set(regs_of(ops[1]))
            self.rd = set(self.wr)
        elif op.startswith('v_readfirstlane') or op.startswith('v_readlane'):
            self.kind = 'readlane'
            self.wr = set(regs_of(ops[0]))
            for o in ops[1:]: self.rd |= set(regs_of(o))
        elif op.startswith('v_'):
            self.kind = 'trans' if op.replace('_e32', '').replace('_e64', '') in TRANS else 'valu'
            self.wr = set(regs_of(ops[0]))
            start = 1
            if op.startswith('v_add_co') or op.startswith('v_addc_co') or op.startswith('v_sub_co'):
                self.wr |= set(regs_of(ops[1])); start = 2
            for o in ops[start:]: self.rd |= set(regs_of(o))
            if op.startswith('v_fmac') or op.startswith('v_dot2c') or op.startswith('v_pk_fmac'):
                self.rd |= self.wr
            if 'row_' in t or 'quad_perm' in t or 'dpp' in op: self.dpp = True
            if op.startswith('v_dot2'): self.kind = 'dot'
        elif op.startswith('ds_read') or op.startswith('ds_bpermute') or op.startswith('ds_swizzle'):
            self.kind = 'ds'
            self.wr = set(regs_of(ops[0]))
            for o in ops[1:]: self.rd |= set(regs_of(o))
        elif op.startswith('ds_'):
            self.kind = 'ds'
            for o in ops: self.rd |= set(regs_of(o))
        elif op.startswith('buffer_load') or op.startswith('global_load'):
            self.kind = 'vmem'
            if ' lds' in t or 'load_lds' in op:
                for o in ops: self.rd |= set(regs_of(o))
                self.rd.add(('m0', 0))
                self.kind = 'vmem_lds'
            else:
                self.wr = set(regs_of(ops[0]))
                for o in ops[1:]: self.rd |= set(regs_of(o))
        elif op.startswith('buffer_store') or op.startswith('global_store') or op.startswith('buffer_atomic') or op.startswith('global_atomic'):
            self.kind = 'vmem_store'
            for o in ops: self.rd |= set(regs_of(o))
        elif op.startswith('buffer_') :
            self.kind = 'vmem'
        elif op.startswith('s_'):
            self.kind = 'salu'
            if op in ('s_nop', 's_waitcnt', 's_barrier', 's_endpgm', 's_branch', 's_setprio', 's_sleep') or op.startswith('s_cbranch'):
                pass
            elif op.startswith('s_cmp'):
                for o in ops: self.rd |= set(regs_of(o))
            else:
                if ops: self.wr = set(regs_of(ops[0]))
                for o in ops[1:]: self.rd |= set(regs_of(o))
                if 'saveexec' in op: self.wr.add(('exec', 0))
        else:
            raise ValueError("unknown instruction: " + text)
    def states(self):
        if self.kind in ('label', 'none'): return 0
        if self.op == 's_nop':
            return int(self.text.split()[1], 0) + 1
        return 1

VALU_KINDS = ('valu', 'trans', 'permlane', 'readlane', 'dot')

def need_states(p, c):
    n = 0
    pv = p.kind in VALU_KINDS
    cv = c.kind in VALU_KINDS
    cmem = c.kind in ('ds', 'vmem', 'vmem_lds', 'vmem_store')
    if p.kind == 'mfma':
        D = p.wr
        big = {4: 8, 8: 12}[p.passes]
        if c.kind == 'mfma':
            if D & c.rd: n = max(n, big)
            if D & c.srcc:
                if D == c.srcc and c.passes == p.passes: pass
                else: n = max(n, {4: 6, 8: 10}[p.passes])
            elif D & c.wr: n = max(n, {4: 6, 8: 10}[p.passes])
        elif cv:
            if D & (c.rd | c.wr): n = max(n, big)
            if p.srcc & c.wr: n = max(n, {4: 3, 8: 7}[p.passes])
        elif cmem:
            if D & (c.rd | c.wr): n = max(n, big)
            if p.srcc & c.wr: n = max(n, {4: 3, 8: 7}[p.passes])
    if pv:
        vw = {r for r in p.wr if r[0] in 'va'}
        sw = {r for r in p.wr if r[0] in ('s', 'vcc')}
        if c.kind == 'mfma' and (vw & (c.rd | c.srcc)): n = max(n, 2)
        if c.kind == 'permlane' and (vw & c.rd): n = max(n, 2)
        if c.dpp and (vw & c.rd): n = max(n, 2)
        if c.kind == 'readlane' and (vw & c.rd): n = max(n, 1)
        if p.kind == 'trans' and cv and c.kind != 'trans' and (vw & c.rd): n = max(n, 1)
        if p.kind == 'trans' and (c.kind == 'trans' or cmem) and (vw & c.rd): n = max(n, 1)
        if p.kind == 'dot' and (cv or cmem or c.kind == 'mfma') and (vw & (c.rd | c.wr)):
            n = max(n, 3)
            if c.op == p.op:
                ops = [x.strip() for x in c.text.split(';')[0].strip()[len(c.op):].split(',')]
                ab = set(regs_of(ops[1])) | set(regs_of(ops[2]))
                if not (vw & ab): n = 0
        if sw:
            if cv and (sw & c.rd): n = max(n, 4 if c.kind == 'readlane' else 2)
            if c.kind in ('vmem', 'vmem_lds', 'vmem_store') and (sw & c.rd): n = max(n, 5)
        if ('exec', 0) in p.wr:
            if c.kind == 'mfma': n = max(n, 4)
            if c.dpp: n = max(n, 5)
    if p.kind == 'salu' and ('m0', 0) in p.wr and c.kind == 'vmem_lds': n = max(n, 1)
    if p.kind == 'vmem_store' and ('x4' in p.op or 'x3' in p.op):
        if (cv or c.kind in ('ds', 'vmem', 'mfma')) and (p.rd & c.wr & {r for r in c.wr if r[0] in 'va'}): n = max(n, 2)
    return n

class Kern:
    def __init__(self):
        self.ins = []
        self.vm = []
        self.lg = []
        self.ntag = 0
    def __call__(self, text):
        for line in text.split('\n'):
            if line.strip():
                self.ins.append(Ins('    ' + line.strip() if not line.strip().endswith(':') else line.strip()))
    def label(self, name): self(name + ':')
    def tag(self):
        self.ntag += 1
        return self.ntag
    def vmem(self, text, tag=None):
        self(text); tag = tag if tag is not None else self.tag(); self.vm.append(tag); return tag
    def lds(self, text, tag=None):
        self(text); tag = tag if tag is not None else self.tag(); self.lg.append(tag); return tag
    def _cnt(self, q, tags):
        idx = -1
        for t in tags:
            for i in range(len(q) - 1, -1, -1):
                if q[i] == t:
                    idx = max(idx, i); break
        return idx
    def wait(self, vm=(), lg=()):
        if not isinstance(vm, (list, tuple, set)): vm = [vm]
        if not isinstance(lg, (list, tuple, set)): lg = [lg]
        parts = []
        i = self._cnt(self.vm, vm)
        if i >= 0:
            n = min(len(self.vm) - 1 - i, 63)
            parts.append(f"vmcnt({n})")
            self.vm = self.vm[len(self.vm) - n:] if n else []
        i = self._cnt(self.lg, lg)
        if i >= 0:
            n = min(len(self.lg) - 1 - i, 15)
            parts.append(f"lgkmcnt({n})")
            self.lg = self.lg[len(self.lg) - n:] if n else []
        if parts: self("s_waitcnt " + " ".join(parts))
    def wait_all(self, vm=True, lg=True):
        parts = []
        if vm: parts.append("vmcnt(0)"); self.vm = []
        if lg: parts.append("lgkmcnt(0)"); self.lg = []
        self("s_waitcnt " + " ".join(parts))
    def finish(self):
        out = []
        WIN = 16
        nnop = 0
        for c in self.ins:
            if c.kind not in ('label', 'none'):
                need = 0
                dist = 0
                for p in reversed(out[-40:]):
                    if dist >= WIN: break
                    if p.kind not in ('label', 'none'):
                        n = need_states(p, c)
                        if n > dist: need = max(need, n - dist)
                    dist += p.states()
                if need:
                    out.append(Ins(f"    s_nop {need - 1}")); nnop += 1
            out.append(c)
        self.nnop = nnop
        return "\n".join(i.text for i in out)

def magic(d, maxn):
    for sh in range(0, 32):
        M = -(-(1 << sh) // d)
        if M >= (1 << 24) or M * maxn >= (1 << 32): continue
        if all((n * M) >> sh == n // d for n in range(maxn + 1)):
            return M, sh
    raise ValueError((d, maxn))

def vdiv(k, dst, src, d, maxn):
    M, sh = magic(d, maxn)
    k(f"v_mul_u32_u24 v{dst}, {M}, v{src}")
    k(f"v_lshrrev_b32 v{dst}, {sh}, v{dst}")

def vdivmod(k, q, r, src, d, maxn):
    vdiv(k, q, src, d, maxn)
    k(f"v_mul_u32_u24 v{r}, {d}, v{q}")
    k(f"v_sub_u32 v{r}, v{src}, v{r}")
```

```python
import struct, math
from asmlib import *
from layout import *

def f32(x):
    return "0x%08x" % struct.unpack("<I", struct.pack("<f", x))[0]
def srd(k, s, lo, size):
    k(f"s_mov_b32 s{s}, s{lo}")
    k(f"s_mov_b32 s{s+1}, s{lo+1}")
    k(f"s_mov_b32 s{s+2}, {size}")
    k(f"s_mov_b32 s{s+3}, 0x00020000")
def rne(k, v, t):
    k(f"v_cvt_pk_bf16_f32 v{t}, v{v}, v{v}")
    k(f"v_lshlrev_b32 v{v}, 16, v{t}")
def unpack8(k, dst, src):
    for i in range(4):
        k(f"v_lshlrev_b32 v{dst+2*i}, 16, v{src+i}")
        k(f"v_and_b32 v{dst+2*i+1}, 0xffff0000, v{src+i}")
def pack8(k, dst, src):
    for i in range(4):
        k(f"v_cvt_pk_bf16_f32 v{dst+i}, v{src+2*i}, v{src+2*i+1}")
def R(a, n=4): return f"v[{a}:{a+n-1}]"
def xsum_g(k, v, t):
    k(f"v_mov_b32 v{t}, v{v}")
    k(f"v_permlane16_swap_b32 v{v}, v{t}")
    k(f"v_add_f32 v{v}, v{v}, v{t}")
    k(f"v_mov_b32 v{t}, v{v}")
    k(f"v_permlane32_swap_b32 v{v}, v{t}")
    k(f"v_add_f32 v{v}, v{v}, v{t}")

def gen_k2():
    k = Kern()
    k("s_cmp_ge_u32 s2, 192")
    k("s_cbranch_scc1 K2_end")
    k("s_load_dwordx2 s[32:33], s[0:1], 80")
    k("v_lshrrev_b32 v1, 6, v0")
    k("v_and_b32 v2, 63, v0")
    k("v_readfirstlane_b32 s3, v1")
    k("s_and_b32 s4, s2, 7")
    k("s_lshr_b32 s5, s2, 3")
    k("s_mul_i32 s6, s5, 43")
    k("s_lshr_b32 s6, s6, 8")
    k("s_mul_i32 s7, s6, 6")
    k("s_sub_u32 s7, s5, s7")
    k("s_lshl_b32 s4, s4, 2")
    k("s_add_u32 s4, s4, s6")
    k("s_lshl_b32 s4, s4, 2")
    k("s_add_u32 s4, s4, s3")
    k("s_lshr_b32 s5, s4, 1")
    k("s_mul_i32 s5, s5, 36864")
    k("s_and_b32 s6, s4, 1")
    k("s_lshl_b32 s6, s6, 8")
    k("s_add_u32 s12, s5, s6")
    k("v_lshrrev_b32 v5, 4, v2")
    k("v_and_b32 v6, 15, v2")
    k("v_lshlrev_b32 v3, 4, v6")
    k("v_lshl_add_u32 v3, v5, 9, v3")
    k("v_lshlrev_b32 v4, 4, v2")
    k(f"s_mul_i32 s13, s7, {WO_PER}")
    k("s_mul_i32 s14, s3, 3072")
    k("s_add_u32 s13, s13, s14")
    k(f"s_add_u32 s13, s13, {WS_WO}")
    k(f"s_add_u32 s15, s12, {WS_O}")
    k("s_waitcnt lgkmcnt(0)")
    srd(k, 8, 32, WS_END)
    OB, ACC, FR, RES, T = 16, 88, 112, 160, 172
    otag = []
    for c in range(9):
        k(f"s_add_u32 m0, s14, {c*12288}")
        if c: k(f"s_add_u32 s13, s13, 12288")
        for j in range(3):
            k.vmem(f"buffer_load_dwordx4 v4, s[8:11], s13 offen offset:{j*1024} lds")
        for e in range(2):
            otag.append(k.vmem(f"buffer_load_dwordx4 {R(OB+4*(2*c+e))}, v3, s[8:11], s15 offen offset:{e*2048}"))
        if c < 8: k("s_add_u32 s15, s15, 4096")
    k("s_mul_i32 s16, s7, 6144")
    k("s_add_u32 s16, s16, s12")
    k(f"s_add_u32 s17, s16, {WS_XA}")
    k(f"s_add_u32 s18, s17, 4096")
    rt = [k.vmem(f"buffer_load_dwordx4 {R(RES)}, v3, s[8:11], s17 offen"),
          k.vmem(f"buffer_load_dwordx4 {R(RES+4)}, v3, s[8:11], s17 offen offset:2048"),
          k.vmem(f"buffer_load_dwordx4 {R(RES+8)}, v3, s[8:11], s18 offen")]
    k("v_add_u32 v7, 65536, v4")
    for c in range(9):
        k.wait(vm=otag[2*c+1])
        k("s_barrier")
        tg = []
        for j in range(12):
            off = (12*c + j) * 1024
            a, o = ("v4", off) if off < 65536 else ("v7", off - 65536)
            tg.append(k.lds(f"ds_read_b128 {R(FR+4*j)}, {a} offset:{o}"))
        for j in range(12):
            Sx, c6 = 2*c + j // 6, j % 6
            k.wait(lg=tg[j])
            C = "0" if Sx == 0 else R(ACC+4*c6)
            k(f"v_mfma_f32_16x16x32_bf16 {R(ACC+4*c6)}, {R(FR+4*j)}, {R(OB+4*Sx)}, {C}")
    k.wait(vm=rt)
    k(f"s_add_u32 s17, s16, {WS_X1}")
    k(f"s_add_u32 s18, s17, 4096")
    for uu in range(3):
        a = ACC + 8*uu
        pack8(k, T, a); unpack8(k, a, T)
        unpack8(k, T+4, RES+4*uu)
        for i in range(8): k(f"v_add_f32 v{a+i}, v{a+i}, v{T+4+i}")
        o = 16 + 4*uu
        pack8(k, o, a)
        if uu < 2: k(f"buffer_store_dwordx4 {R(o)}, v3, s[8:11], s17 offen offset:{uu*2048}")
        else: k(f"buffer_store_dwordx4 {R(o)}, v3, s[8:11], s18 offen")
        unpack8(k, a, o)
    s, m2, t, mean = T, T+1, T+2, T+3
    k(f"v_add_f32 v{s}, v{ACC}, v{ACC+1}")
    for i in range(2, 24): k(f"v_add_f32 v{s}, v{s}, v{ACC+i}")
    xsum_g(k, s, t)
    k(f"v_mul_f32 v{mean}, {f32(1.0/96)}, v{s}")
    for i in range(24): k(f"v_sub_f32 v{ACC+i}, v{ACC+i}, v{mean}")
    k(f"v_mul_f32 v{m2}, v{ACC}, v{ACC}")
    for i in range(1, 24): k(f"v_fmac_f32 v{m2}, v{ACC+i}, v{ACC+i}")
    xsum_g(k, m2, t)
    k("v_mul_u32_u24 v8, 48, v6")
    k("s_mul_i32 s19, s4, 768")
    k("s_lshl_b32 s20, s7, 3")
    k("s_add_u32 s19, s19, s20")
    k(f"s_add_u32 s19, s19, {WS_STATS}")
    k(f"buffer_store_dwordx2 v[{s}:{m2}], v8, s[8:11], s19 offen")
    k.label("K2_end")
    k("s_endpgm")
    return k, dict(vgpr=192, sgpr=48, grid=192, block=256, lds=108*1024)

ROW = 336
def pos_of(G):
    if G >= 27: return ('pad', None)
    sec, Gp = divmod(G, 9)
    p = 8*Gp if Gp < 4 else (64 if Gp == 4 else 32 + 8*(Gp-5))
    if sec == 0: return ('h', p)
    if sec == 1: return ('h', 80 + p)
    return ('f', 160 + 2*p)

def k1_stage_out(k, acc_of, cts, vrow, vg8, T, extra_off):
    for ct in cts:
        kinds = [pos_of(4*ct + g) for g in range(4)]
        a = acc_of(ct)
        has_h = any(x[0] == 'h' for x in kinds)
        has_f = any(x[0] == 'f' for x in kinds)
        k(f"v_cvt_pk_bf16_f32 v{T}, v{a}, v{a+1}")
        k(f"v_cvt_pk_bf16_f32 v{T+1}, v{a+2}, v{a+3}")
        if has_h:
            packed = sum(((x[1] if x[0] == 'h' else 72) // 8) << (8*g) for g, x in enumerate(kinds))
            k(f"s_mov_b32 s30, {packed}")
            k(f"v_bfe_u32 v{T+2}, s30, v{vg8}, 8")
            k(f"v_lshl_add_u32 v{T+2}, v{T+2}, 3, v{vrow}")
            k.lds(f"ds_write_b64 v{T+2}, v[{T}:{T+1}] offset:{extra_off}")
        if has_f:
            packed = sum(((x[1] if x[0] == 'f' else 304) // 8) << (8*g) for g, x in enumerate(kinds))
            k(f"s_mov_b32 s30, {packed}")
            k(f"v_bfe_u32 v{T+3}, s30, v{vg8}, 8")
            k(f"v_lshl_add_u32 v{T+3}, v{T+3}, 3, v{vrow}")
            k(f"v_lshlrev_b32 v{a}, 16, v{T}")
            k(f"v_and_b32 v{a+1}, 0xffff0000, v{T}")
            k(f"v_lshlrev_b32 v{a+2}, 16, v{T+1}")
            k(f"v_and_b32 v{a+3}, 0xffff0000, v{T+1}")
            k.lds(f"ds_write_b128 v{T+3}, {R(a)} offset:{extra_off}")
        T = T + 4 if T < 40 else 16

def gen_k1():
    k = Kern()
    k("s_cmp_ge_u32 s2, 256")
    k("s_cbranch_scc1 K1_end")
    k("s_load_dwordx2 s[32:33], s[0:1], 80")
    k("v_lshrrev_b32 v1, 6, v0")
    k("v_and_b32 v2, 63, v0")
    k("v_readfirstlane_b32 s3, v1")
    k("s_and_b32 s4, s2, 7")
    k("s_lshr_b32 s5, s2, 3")
    k("s_lshr_b32 s6, s4, 1")
    k("s_lshl_b32 s6, s6, 2")
    k("s_lshr_b32 s7, s5, 3")
    k("s_add_u32 s6, s6, s7")
    k("s_and_b32 s7, s4, 1")
    k("s_lshl_b32 s7, s7, 3")
    k("s_and_b32 s5, s5, 7")
    k("s_add_u32 s7, s7, s5")
    k("v_lshrrev_b32 v5, 4, v2")
    k("v_and_b32 v6, 15, v2")
    k("v_lshlrev_b32 v3, 4, v6")
    k("v_lshl_add_u32 v3, v5, 9, v3")
    k("v_lshlrev_b32 v4, 4, v2")
    k("v_add_u32 v7, 65536, v4")
    k("v_lshlrev_b32 v8, 3, v5")
    k(f"s_mul_i32 s13, s7, {WQ_PER}")
    k("s_mul_i32 s14, s3, 3072")
    k("s_add_u32 s13, s13, s14")
    k(f"s_add_u32 s13, s13, {WS_WQ}")
    k("s_lshl_b32 s15, s6, 2")
    k("s_waitcnt lgkmcnt(0)")
    srd(k, 8, 32, WS_END)
    k("s_cmp_eq_u32 s3, 4")
    k("s_cbranch_scc1 K1_halo")
    XB, ACC, FR = 16, 160, 216
    def frag_addr(idx):
        off = idx * 1024
        return ("v4", off) if off < 65536 else ("v7", off - 65536)
    k("s_add_u32 s15, s15, s3")
    k("s_mul_i32 s15, s15, 36864")
    xtag = []
    for c in range(9):
        k(f"s_add_u32 m0, s14, {c*14336}")
        if c: k("s_add_u32 s13, s13, 14336")
        for j in range(3):
            k.vmem(f"buffer_load_dwordx4 v4, s[8:11], s13 offen offset:{j*1024} lds")
        for so in range(2):
            for e in range(2):
                t = k.vmem(f"buffer_load_dwordx4 {R(XB+4*((2*c+so)*2+e))}, v3, s[8:11], s15 offen offset:{so*2048+e*256}")
        xtag.append(t)
        if c < 8: k("s_add_u32 s15, s15, 4096")
    k("s_lshr_b32 s20, s3, 1")
    k("s_mul_i32 s21, s7, 18")
    k("s_mul_i32 s22, s20, 9")
    k("s_add_u32 s21, s21, s22")
    for j in range(9):
        if j < 8:
            k(f"s_add_u32 s22, s21, s20")
            k(f"s_add_u32 s22, s22, {j}")
        else:
            k("s_lshl_b32 s22, s20, 3")
            k("s_sub_u32 s22, s21, s22")
            k("s_add_u32 s22, s22, 8")
        k("s_lshr_b32 s23, s22, 2")
        k("s_lshl_b32 s23, s23, 9")
        k("s_and_b32 s22, s22, 3")
        k("s_lshl_b32 s22, s22, 2")
        k("s_add_u32 s23, s23, s22")
        k(f"s_add_u32 s{40+j}, s23, {WS_O}")
    NB = 8
    for c in range(9):
        k.wait(vm=xtag[c])
        k("s_barrier")
        tg = {}
        def rd(j):
            a, o = frag_addr(14*c + j)
            tg[j] = k.lds(f"ds_read_b128 {R(FR+4*(j % NB))}, {a} offset:{o}")
        for j in range(NB): rd(j)
        for j in range(14):
            Sx, ct = 2*c + j // 7, j % 7
            k.wait(lg=tg[j])
            for e in range(2):
                a = ACC + 4*(e*7+ct)
                C = "0" if Sx == 0 else R(a)
                k(f"v_mfma_f32_16x16x32_bf16 {R(a)}, {R(FR+4*(j % NB))}, {R(XB+4*(Sx*2+e))}, {C}")
            if j + NB < 14: rd(j + NB)
    k("s_lshl_b32 s24, s3, 5")
    k("s_add_u32 s24, s24, 16")
    k("v_add_u32 v9, s24, v6")
    k(f"v_mul_u32_u24 v9, {ROW}, v9")
    for e in range(2):
        k1_stage_out(k, lambda ct: ACC + 4*(e*7+ct), range(7), 9, 8, 16, e*16*ROW)
    k.wait_all(vm=False)
    k("s_barrier")
    k("s_and_b32 s24, s3, 1")
    k("s_lshl_b32 s24, s24, 6")
    k("v_add_u32 v9, s24, v2")
    k("v_add_u32 v10, 2, v9")
    k(f"v_mul_u32_u24 v10, {ROW}, v10")
    k("s_lshl_b32 s25, s20, 5")
    k("v_add_u32 v11, s25, v10")
    k("s_lshl_b32 s25, s20, 2")
    k("v_add_u32 v12, s25, v10")
    k("s_lshl_b32 s25, s20, 6")
    k("v_add_u32 v13, s25, v10")
    k("s_lshl_b32 s25, s20, 3")
    k("v_add_u32 v14, s25, v10")
    Q, KB, VB = 16, 28, 112
    qt = [k.lds(f"ds_read_b128 {R(Q)}, v11 offset:{14*ROW}"),
          k.lds(f"ds_read_b128 {R(Q+4)}, v11 offset:{14*ROW+16}"),
          k.lds(f"ds_read_b32 v{Q+8}, v12 offset:{14*ROW+64}")]
    kt = []
    for w in range(8):
        o = (14 - 2*w) * ROW + 80
        b = KB + 10*w
        k.lds(f"ds_read_b128 {R(b)}, v11 offset:{o}")
        k.lds(f"ds_read_b128 {R(b+4)}, v11 offset:{o+16}")
        kt.append(k.lds(f"ds_read_b32 v{b+8}, v12 offset:{o+64}"))
    k("s_lshl_b32 s25, s6, 7")
    k("v_add_u32 v15, s25, v9")
    LG = 0
    Lr = [0, 1, 3, 4, 5, 6, 7, 8]
    vt = []
    def rdv(w):
        o = (14 - 2*w) * ROW + 160
        b = VB + 18*w
        for i in range(4):
            k.lds(f"ds_read_b128 {R(b+4*i)}, v13 offset:{o+16*i}")
        vt.append(k.lds(f"ds_read_b64 v[{b+16}:{b+17}], v14 offset:{o+128}"))
    for w in range(8):
        k.wait(lg=kt[w])
        b = KB + 10*w
        k(f"v_dot2_f32_bf16 v{Lr[w]}, v{Q}, v{b}, 0")
        for i in range(1, 9):
            k(f"v_dot2_f32_bf16 v{Lr[w]}, v{Q+i}, v{b+i}, v{Lr[w]}")
        if w >= 3: rdv(w - 3)
    for w in range(5, 8): rdv(w)
    k(f"v_mov_b32 v25, {f32(-1e30)}")
    for w in range(1, 8):
        k(f"v_cmp_le_u32 vcc, {2*w}, v15")
        k(f"v_cndmask_b32 v{Lr[w]}, v25, v{Lr[w]}, vcc")
    k(f"v_max3_f32 v26, v{Lr[0]}, v{Lr[1]}, v{Lr[2]}")
    k(f"v_max3_f32 v26, v26, v{Lr[3]}, v{Lr[4]}")
    k(f"v_max3_f32 v26, v26, v{Lr[5]}, v{Lr[6]}")
    k(f"v_max_f32 v26, v26, v{Lr[7]}")
    cs = (18 ** -0.5) * math.log2(math.e)
    k(f"s_mov_b32 s26, {f32(cs)}")
    for w in range(8):
        k(f"v_sub_f32 v{Lr[w]}, v{Lr[w]}, v26")
        k(f"v_mul_f32 v{Lr[w]}, s26, v{Lr[w]}")
        k(f"v_exp_f32 v{Lr[w]}, v{Lr[w]}")
    k(f"v_add_f32 v26, v{Lr[0]}, v{Lr[1]}")
    for w in range(2, 8): k(f"v_add_f32 v26, v26, v{Lr[w]}")
    k("v_rcp_f32 v26, v26")
    for w in range(8): k(f"v_mul_f32 v{Lr[w]}, v{Lr[w]}, v26")
    for w in range(0, 8, 2):
        k(f"v_cvt_pk_bf16_f32 v27, v{Lr[w]}, v{Lr[w+1]}")
        k(f"v_lshlrev_b32 v{Lr[w]}, 16, v27")
        k(f"v_and_b32 v{Lr[w+1]}, 0xffff0000, v27")
    O = 28
    for w in range(8):
        k.wait(lg=vt[w])
        b = VB + 18*w
        for d in range(18):
            if w == 0: k(f"v_mul_f32 v{O+d}, v{Lr[0]}, v{b+d}")
            else: k(f"v_fmac_f32 v{O+d}, v{Lr[w]}, v{b+d}")
    k("v_lshrrev_b32 v26, 5, v15")
    k("v_mul_u32_u24 v26, 36864, v26")
    k("v_and_b32 v27, 31, v15")
    k("v_lshl_add_u32 v26, v27, 4, v26")
    for j in range(9):
        k(f"v_cvt_pk_bf16_f32 v{48+j}, v{O+2*j}, v{O+2*j+1}")
        k(f"buffer_store_dword v{48+j}, v26, s[8:11], s{40+j} offen")
    k("s_endpgm")
    k.label("K1_halo")
    k.vm = []; k.lg = []
    k("s_max_u32 s15, s15, 1")
    k("s_sub_u32 s15, s15, 1")
    k("s_mul_i32 s15, s15, 36864")
    xtag = []
    for c in range(9):
        k(f"s_add_u32 m0, s14, {c*14336}")
        if c: k("s_add_u32 s13, s13, 14336")
        for j in range(2):
            k.vmem(f"buffer_load_dwordx4 v4, s[8:11], s13 offen offset:{j*1024} lds")
        for so in range(2):
            t = k.vmem(f"buffer_load_dwordx4 {R(XB+4*(2*c+so))}, v3, s[8:11], s15 offen offset:{so*2048+256}")
        xtag.append(t)
        if c < 8: k("s_add_u32 s15, s15, 4096")
    for c in range(9):
        k.wait(vm=xtag[c])
        k("s_barrier")
        tg = []
        items = [(so, ct) for so in range(2) for ct in range(2, 7)]
        for j, (so, ct) in enumerate(items):
            a, o = frag_addr(14*c + so*7 + ct)
            tg.append(k.lds(f"ds_read_b128 {R(96+4*j)}, {a} offset:{o}"))
        for j, (so, ct) in enumerate(items):
            Sx = 2*c + so
            k.wait(lg=tg[j])
            a = ACC + 4*ct
            C = "0" if Sx == 0 else R(a)
            k(f"v_mfma_f32_16x16x32_bf16 {R(a)}, {R(96+4*j)}, {R(XB+4*Sx)}, {C}")
    k(f"v_mul_u32_u24 v9, {ROW}, v6")
    k1_stage_out(k, lambda ct: ACC + 4*ct, range(2, 7), 9, 8, 16, 0)
    k.wait_all(vm=False)
    k("s_barrier")
    k.label("K1_end")
    k("s_endpgm")
    return k, dict(vgpr=256, sgpr=64, grid=256, block=320, lds=126*1024)

from gen3 import gen_k3
```

```python
import struct, math
from asmlib import *
from layout import *

def f32(x):
    return "0x%08x" % struct.unpack("<I", struct.pack("<f", x))[0]
def srd(k, s, lo, size):
    k(f"s_mov_b32 s{s}, s{lo}")
    k(f"s_mov_b32 s{s+1}, s{lo+1}")
    k(f"s_mov_b32 s{s+2}, {size}")
    k(f"s_mov_b32 s{s+3}, 0x00020000")
def rne(k, v, t):
    k(f"v_cvt_pk_bf16_f32 v{t}, v{v}, v{v}")
    k(f"v_lshlrev_b32 v{v}, 16, v{t}")
def R(a, n=4): return f"v[{a}:{a+n-1}]"

SLOT = 36864
XREG = 3 * SLOT
BIAS = XREG + 8 * 6144
K3_LDS = BIAS + 1152

def gen_k3():
    k = Kern()
    k("s_cmp_ge_u32 s2, 256")
    k("s_cbranch_scc1 K3_end")
    k("s_load_dwordx2 s[32:33], s[0:1], 80")
    k("v_lshrrev_b32 v1, 6, v0")
    k("v_and_b32 v15, 63, v0")
    k("v_readfirstlane_b32 s3, v1")
    k("s_and_b32 s4, s2, 7")
    k("s_lshr_b32 s5, s2, 3")
    k("s_lshr_b32 s6, s4, 1")
    k("s_lshl_b32 s6, s6, 2")
    k("s_and_b32 s7, s5, 3")
    k("s_add_u32 s6, s6, s7")
    k("s_and_b32 s7, s4, 1")
    k("s_lshl_b32 s7, s7, 3")
    k("s_lshr_b32 s5, s5, 2")
    k("s_add_u32 s7, s7, s5")
    k("s_and_b32 s12, s3, 3")
    k("s_lshr_b32 s13, s3, 2")
    k("s_lshl_b32 s14, s7, 2")
    k("s_add_u32 s14, s14, s12")
    k("v_lshlrev_b32 v1, 4, v15")
    k("s_mul_i32 s15, s13, 18432")
    k("v_add_u32 v2, s15, v1")
    k(f"v_add_u32 v3, {SLOT}, v2")
    k(f"v_add_u32 v4, {2*SLOT}, v2")
    k("s_xor_b32 s16, s3, 4")
    k("s_mul_i32 s16, s16, 6144")
    k(f"s_add_u32 s16, s16, {XREG}")
    k("v_add_u32 v5, s16, v1")
    k("s_mul_i32 s16, s3, 6144")
    k(f"s_add_u32 s16, s16, {XREG}")
    k("v_add_u32 v6, s16, v1")
    k("v_lshrrev_b32 v9, 5, v15")
    k("v_lshlrev_b32 v9, 5, v9")
    k("s_lshl_b32 s16, s13, 6")
    k(f"s_add_u32 s17, s16, {BIAS}")
    k("v_add_u32 v7, s17, v9")
    k("s_xor_b32 s16, s16, 64")
    k(f"s_add_u32 s17, s16, {BIAS}")
    k("v_add_u32 v8, s17, v9")
    k("v_and_b32 v10, 31, v15")
    k("v_mul_u32_u24 v10, 48, v10")
    k("v_lshlrev_b32 v11, 2, v15")
    k("s_mul_i32 s18, s3, 4608")
    k(f"s_mul_i32 s19, s6, {W12_PER}")
    k("s_add_u32 s19, s19, s18")
    k(f"s_add_u32 s19, s19, {WS_W12}")
    k("s_mul_i32 s20, s14, 36864")
    k("s_add_u32 s20, s20, s15")
    k(f"s_add_u32 s21, s20, {WS_X1}")
    k(f"s_mul_i32 s22, s6, {ACT}")
    k("s_add_u32 s22, s22, s20")
    k(f"s_add_u32 s22, s22, {WS_PART}")
    k("s_mul_i32 s23, s14, 1536")
    k(f"s_add_u32 s23, s23, {WS_STATS}")
    k("s_mul_i32 s24, s6, 1152")
    k("s_lshl_b32 s25, s3, 7")
    k("s_add_u32 s24, s24, s25")
    k(f"s_add_u32 s24, s24, {WS_B1H}")
    k(f"s_add_u32 s25, s25, {BIAS}")
    c1 = -2.0 * math.log2(math.e) * math.sqrt(2.0 / math.pi)
    c2 = c1 * 0.044715
    k(f"s_mov_b32 s40, {f32(c2)}")
    k(f"v_mov_b32 v13, {f32(c1)}")
    k("s_waitcnt lgkmcnt(0)")
    srd(k, 8, 32, WS_END)

    XN, SETS, FR, T = 16, (88, 136), 184, 244
    HREG = {(0, 0): 208, (0, 1): 220, (1, 0): 232, (1, 1): 16, (0, 2): 28, (1, 2): 40}
    NB = 6
    st_tags = [k.vmem(f"buffer_load_dwordx4 {R(T+4*i)}, v10, s[8:11], s23 offen offset:{16*i}") for i in range(3)]
    k("s_mov_b32 m0, s25")
    k.vmem("buffer_load_dword v11, s[8:11], s24 offen lds")
    dma_tag = {}
    def dma_items(st):
        items = []
        def head():
            k(f"s_add_u32 m0, s18, {(st % 3) * SLOT}")
            if st: k(f"s_add_u32 s19, s19, {SLOT}")
        items.append(head)
        for o in (0, 1024, 2048, 3072, 3584):
            def ld(o=o):
                dma_tag[st] = k.vmem(f"buffer_load_dwordx4 v1, s[8:11], s19 offen offset:{o} lds")
            items.append(ld)
        return items
    xt = {}
    for st in range(3):
        for it in dma_items(st): it()
        for ks in range(6*st, 6*st + 6):
            if ks and ks % 4 == 0: k("s_add_u32 s21, s21, 4096")
            xt[ks] = k.vmem(f"buffer_load_dwordx4 {R(XN+4*ks)}, v1, s[8:11], s21 offen offset:{(ks % 4)*1024}")
    k.wait(vm=st_tags)
    k(f"v_add_f32 v9, v{T}, v{T+2}")
    for i in range(2, 6): k(f"v_add_f32 v9, v9, v{T+2*i}")
    k(f"v_mul_f32 v9, {f32(1.0/576)}, v9")
    k(f"v_add_f32 v10, v{T+1}, v{T+3}")
    for i in range(2, 6): k(f"v_add_f32 v10, v10, v{T+2*i+1}")
    k(f"s_mov_b32 s41, {f32(1.0/96)}")
    for i in range(6): k(f"v_fma_f32 v{T+2*i}, v{T+2*i}, s41, -v9")
    k(f"v_mul_f32 v12, v{T}, v{T}")
    for i in range(1, 6): k(f"v_fmac_f32 v12, v{T+2*i}, v{T+2*i}")
    k(f"v_fmac_f32 v10, {f32(96.0)}, v12")
    k(f"v_mul_f32 v10, {f32(1.0/576)}, v10")
    rne(k, 10, 12)
    k(f"v_add_f32 v10, {f32(1e-5)}, v10")
    rne(k, 10, 12)
    k("v_sqrt_f32 v10, v10")
    rne(k, 10, 12)
    k("v_rcp_f32 v10, v10")
    rne(k, 9, 12)
    k("v_mul_f32 v9, v9, v10")
    k("v_sub_f32 v9, 0, v9")

    def norm_items(ks):
        items = []
        b = XN + 4*ks
        tb = T + (ks % 2) * 4 if False else T
        for i in range(4):
            def f(i=i):
                if i == 0: k.wait(vm=xt[ks])
                t0 = T + 2*((4*ks + i) % 6)
                k(f"v_lshlrev_b32 v{t0}, 16, v{b+i}")
                k(f"v_and_b32 v{t0+1}, 0xffff0000, v{b+i}")
                k(f"v_fma_f32 v{t0}, v{t0}, v10, v9")
                k(f"v_fma_f32 v{t0+1}, v{t0+1}, v10, v9")
                k(f"v_cvt_pk_bf16_f32 v{b+i}, v{t0}, v{t0+1}")
            items.append(f)
        return items

    NM = 324
    after = [[] for _ in range(NM + 1)]
    before = [[] for _ in range(NM + 1)]
    def spread(items, start, end):
        n = len(items); span = end - start
        for q, it in enumerate(items):
            after[start + q * span // n].append(it)
    bias_tag = {}
    def bias_items(g):
        items = []
        P = SETS[g % 2]
        for tl in range(3):
            for q in range(4):
                def f(tl=tl, q=q):
                    a = "v7" if q < 2 else "v8"
                    bias_tag[(g, tl)] = k.lds(f"ds_read_b128 {R(P+16*tl+4*q)}, {a} offset:{(3*g+tl)*128 + (q % 2)*16}")
                items.append(f)
        return items
    hpar_tag = {}
    xw_tags = []
    def post_group(g):
        P = SETS[g % 2]
        b = 54 * (g + 1)
        for tl in range(3):
            def wr(tl=tl):
                if tl == 0 and g > 0: k.wait(lg=[hpar_tag[(g-1, t)] for t in range(3)])
                for e in range(2):
                    xw_tags.append(k.lds(f"ds_write_b128 v5, {R(P+16*tl+8+4*e)} offset:{(2*tl+e)*1024}"))
            after[b + tl].append(wr)
        inc = {}
        def xb():
            k.wait(lg=list(xw_tags))
            k("s_barrier")
            for tl in range(3):
                for e in range(2):
                    inc[(tl, e)] = k.lds(f"ds_read_b128 {R(P+16*tl+8+4*e)}, v6 offset:{(2*tl+e)*1024}")
        before[b + 6].append(xb)
        items = []
        H = HREG[(0, g)]
        for tl in range(3):
            for e in range(2):
                u = P + 16*tl + 4*e; w = u + 8
                tb = T + 4 * ((2*tl + e) % 3)
                def s0(tl=tl, e=e, u=u, w=w):
                    k.wait(lg=inc[(tl, e)])
                    for i in range(4): k(f"v_add_f32 v{u+i}, v{u+i}, v{w+i}")
                def s1(u=u, tb=tb):
                    for i in range(4): k(f"v_mul_f32 v{tb+i}, v{u+i}, v{u+i}")
                def s2(tb=tb):
                    for i in range(4): k(f"v_fma_f32 v{tb+i}, v{tb+i}, s40, v13")
                def s3(u=u, tb=tb):
                    for i in range(4): k(f"v_mul_f32 v{tb+i}, v{tb+i}, v{u+i}")
                def s4(tb=tb):
                    for i in range(4): k(f"v_exp_f32 v{tb+i}, v{tb+i}")
                def s5(tb=tb):
                    for i in range(4): k(f"v_add_f32 v{tb+i}, 1.0, v{tb+i}")
                def s6(tb=tb):
                    for i in range(4): k(f"v_rcp_f32 v{tb+i}, v{tb+i}")
                def s7(tl=tl, e=e, u=u, tb=tb):
                    for i in range(4): k(f"v_mul_f32 v{u+i}, v{u+i}, v{tb+i}")
                    k(f"v_cvt_pk_bf16_f32 v{H+4*tl+2*e}, v{u}, v{u+1}")
                    k(f"v_cvt_pk_bf16_f32 v{H+4*tl+2*e+1}, v{u+2}, v{u+3}")
                    if e == 1:
                        k.lds(f"ds_write_b128 v6, {R(H+4*tl)} offset:{tl*2048}")
                items += [s0, s1, s2, s3, s4, s5, s6, s7]
        end = b + (54 - 12 if g < 2 else 36 - 6)
        spread(items, b + 8, end)
    for g in range(3): post_group(g)
    spread(bias_items(1), 30, 48)
    spread(bias_items(2), 108 - 11, 108 - 5)
    def out_items(g2):
        P = SETS[(3 + g2) % 2]
        items = []
        for tl in range(3):
            a = P + 16*tl
            for e in range(2):
                def f(a=a, e=e, tl=tl):
                    for i in range(4):
                        k(f"v_cvt_pk_bf16_f32 v{a+4*e+i}, v{a+8*e+2*i}, v{a+8*e+2*i+1}")
                    q = 6*g2 + 2*tl + e
                    if q and q % 4 == 0: k("s_add_u32 s22, s22, 4096")
                    k.vmem(f"buffer_store_dwordx4 {R(a+4*e)}, v1, s[8:11], s22 offen offset:{(q % 4)*1024}")
                items.append(f)
        return items
    spread(out_items(0), 216 + 2, 216 + 26)
    spread(out_items(1), 270 + 2, 270 + 26)

    rtag = {}
    def rd(f):
        st, j = divmod(f, 18)
        rtag[f] = k.lds(f"ds_read_b128 {R(FR+4*(f % NB))}, v{2 + st % 3} offset:{j*1024}")
    for it in norm_items(0): it()
    k.wait(vm=dma_tag[0])
    k("s_barrier")
    for it in bias_items(0): it()
    for f in range(5): rd(f)
    for ks in range(1, 18):
        its = norm_items(ks)
        after[3*(ks-1)] += its[:2]
        after[3*(ks-1)+1] += its[2:3]
        after[3*(ks-1)+2] += its[3:]
    nxt = 5
    for i in range(NM):
        st, j = divmod(i, 18)
        g, sub = divmod(st, 3)
        ksl, tl = divmod(j, 3)
        for it in before[i]: it()
        if j == 14 and st + 1 < 18:
            k.wait(vm=dma_tag[st+1], lg=list(k.lg))
            k("s_barrier")
            if st + 3 < 18:
                its = dma_items(st + 3)
                after[i] = its[:3] + after[i]
                after[i+1] = its[3:] + after[i+1]
            G = {5: 0, 8: 1, 10: 2}.get(st)
            if G is not None:
                for t in range(3):
                    hpar_tag[(G, t)] = k.lds(f"ds_read_b128 {R(HREG[(1, G)]+4*t)}, v5 offset:{t*2048}")
        lim = min(i + 5, NM - 1)
        if j < 14: lim = min(lim, 18*st + 17)
        while nxt <= lim:
            rd(nxt); nxt += 1
        P = SETS[g % 2] + 16*tl
        need = [rtag[i]]
        if g < 3:
            B = XN + 4*(6*sub + ksl)
            C = R(P, 16)
            if sub == 0 and ksl == 0: need.append(bias_tag[(g, tl)])
        else:
            which, tlp = divmod(ksl, 3)
            B = HREG[(which, sub)] + 4*tlp
            C = "0" if (sub == 0 and ksl == 0) else R(P, 16)
            if which == 1: need.append(hpar_tag[(sub, tlp)])
        k.wait(lg=need)
        k(f"v_mfma_f32_32x32x16_bf16 {R(P,16)}, {R(FR+4*(i % NB))}, {R(B)}, {C}")
        for it in after[i]: it()
    for it in out_items(2): it()
    k.label("K3_end")
    k("s_endpgm")
    return k, dict(vgpr=256, sgpr=64, grid=256, block=512, lds=K3_LDS)
```

```python
import numpy as np
S, D, F, H, DH = 2048, 576, 4608, 32, 18
ACT = S * D * 2
WS_XN = 0
WS_XA = 0x240000
WS_O = 0x480000
WS_X1 = 0x6C0000
WS_STATS = 0x900000
WS_B1H = 0x920000
WS_WQ = 0x940000
WS_WO = 0xB40000
WS_W12 = 0xC00000
WS_PART = 0x1800000
WS_END = 0x3C00000
WQ_PER = 126 * 1024
WO_PER = 108 * 1024
W12_PER = 648 * 1024

def a32_decode(buf_u16):
    a = buf_u16.reshape(S // 32, 36, 2, 32, 8)
    return a.transpose(0, 3, 1, 2, 4).reshape(S, D)

def a32_encode(x):
    a = x.reshape(S // 32, 32, 36, 2, 8).transpose(0, 2, 3, 1, 4)
    return np.ascontiguousarray(a).reshape(-1)

def wq_ref(wqkv):
    out = np.zeros((16, 18, 7, 64, 8), dtype=wqkv.dtype)
    valid = np.zeros((7, 64), dtype=bool)
    for hp in range(16):
        for ct in range(7):
            for l in range(64):
                m = l & 15; g = l >> 4
                G = 4 * ct + (m >> 2); r = m & 3
                if G >= 27: continue
                valid[ct, l] = True
                sec, Gp = divmod(G, 9)
                col = sec * 576 + hp * 36 + Gp * 4 + r
                for Sx in range(18):
                    out[hp, Sx, ct, l, :] = wqkv[32 * Sx + 8 * g: 32 * Sx + 8 * g + 8, col]
    return out, valid

def wo_ref(wo):
    out = np.zeros((6, 18, 6, 64, 8), dtype=wo.dtype)
    for sl in range(6):
        for c6 in range(6):
            ct = sl * 6 + c6
            u32, u = divmod(ct, 2)
            for l in range(64):
                m = l & 15; g = l >> 4
                col = 32 * u32 + 8 * (m >> 2) + 4 * u + (m & 3)
                for Sx in range(18):
                    out[sl, Sx, c6, l, :] = wo[32 * Sx + 8 * g: 32 * Sx + 8 * g + 8, col]
    return out

def m_to_local(m, flip=0):
    hp = (m >> 2) & 1
    j = (m >> 3) * 4 + (m & 3)
    return (((j >> 3) ^ flip) * 16) + hp * 8 + (j & 7)

def w12_ref(w1, w2):
    out = np.zeros((16, 18, 2, 6, 3, 64, 8), dtype=w1.dtype)
    ms = np.arange(32)
    for fc in range(16):
        for st in range(18):
            for rho in range(2):
                for ksl in range(6):
                    for tl in range(3):
                        for h in range(2):
                            if st < 9:
                                g, sub = divmod(st, 3)
                                ft = 3 * g + tl
                                s = 18 * rho + 6 * sub + ksl
                                cols = 288 * fc + 32 * ft + np.array([m_to_local(m, rho) for m in ms])
                                k0 = 16 * s + 8 * h
                                out[fc, st, rho, ksl, tl, h * 32:(h + 1) * 32, :] = w1[k0:k0 + 8][:, cols].T
                            else:
                                g2, G = divmod(st - 9, 3)
                                nt = 9 * rho + 3 * g2 + tl
                                which, tlp = divmod(ksl, 3)
                                t = 3 * G + tlp
                                s = 2 * t + (rho ^ which)
                                cols = 32 * nt + np.array([m_to_local(m, 0) for m in ms])
                                k0 = 288 * fc + 16 * s + 8 * h
                                out[fc, st, rho, ksl, tl, h * 32:(h + 1) * 32, :] = w2[k0:k0 + 8][:, cols].T
    return out
```

```python
import sys, struct
from asmlib import *
from layout import *

NAME = "interleave_layers__sliding_local_dilated__dense_activation_gelu__prompt"

def f32(x):
    return "0x%08x" % struct.unpack("<I", struct.pack("<f", x))[0]

def srd(k, s, lo, size):
    k(f"s_mov_b32 s{s}, s{lo}")
    k(f"s_mov_b32 s{s+1}, s{lo+1}")
    k(f"s_mov_b32 s{s+2}, {size}")
    k(f"s_mov_b32 s{s+3}, 0x00020000")

def rne(k, v, t):
    k(f"v_cvt_pk_bf16_f32 v{t}, v{v}, v{v}")
    k(f"v_lshlrev_b32 v{v}, 16, v{t}")

def unpack8(k, dst, src):
    for i in range(4):
        k(f"v_lshlrev_b32 v{dst+2*i}, 16, v{src+i}")
        k(f"v_and_b32 v{dst+2*i+1}, 0xffff0000, v{src+i}")

def pack8(k, dst, src):
    for i in range(4):
        k(f"v_cvt_pk_bf16_f32 v{dst+i}, v{src+2*i}, v{src+2*i+1}")

def row_reduce(k, v, t, vaddr_w, vaddr_r, off, r):
    k(f"v_add_f32_dpp v{v}, v{v}, v{v} row_ror:8 row_mask:0xf bank_mask:0xf")
    k(f"v_mov_b32 v{t}, v{v}")
    k(f"v_permlane16_swap_b32 v{v}, v{t}")
    k(f"v_add_f32 v{v}, v{v}, v{t}")
    k(f"v_mov_b32 v{t}, v{v}")
    k(f"v_permlane32_swap_b32 v{v}, v{t}")
    k(f"v_add_f32 v{v}, v{v}, v{t}")
    k(f"ds_write_b32 v{vaddr_w}, v{v} offset:{off}")
    k("s_waitcnt lgkmcnt(0)")
    k("s_barrier")
    k(f"ds_read_b128 v[{r}:{r+3}], v{vaddr_r} offset:{off}")
    k(f"ds_read_b128 v[{r+4}:{r+7}], v{vaddr_r} offset:{off+16}")
    k(f"ds_read_b32 v{r+8}, v{vaddr_r} offset:{off+32}")
    k("s_waitcnt lgkmcnt(0)")
    k(f"v_add_f32 v{v}, v{r}, v{r+1}")
    for i in range(2, 9):
        k(f"v_add_f32 v{v}, v{v}, v{r+i}")

def layernorm(k, x, out, t, vaddr_w, vaddr_r):
    s, u, mean = t, t + 1, t + 2
    r = t + 4
    d = t + 14
    k(f"v_add_f32 v{s}, v{x}, v{x+1}")
    for i in range(2, 8): k(f"v_add_f32 v{s}, v{s}, v{x+i}")
    row_reduce(k, s, u, vaddr_w, vaddr_r, 0, r)
    k(f"v_mul_f32 v{mean}, {f32(1.0/576)}, v{s}")
    for i in range(8): k(f"v_sub_f32 v{d+i}, v{x+i}, v{mean}")
    k(f"v_mul_f32 v{s}, v{d}, v{d}")
    for i in range(1, 8): k(f"v_fmac_f32 v{s}, v{d+i}, v{d+i}")
    row_reduce(k, s, u, vaddr_w, vaddr_r, 512, r)
    k(f"v_mul_f32 v{s}, {f32(1.0/576)}, v{s}")
    rne(k, s, u)
    k(f"v_add_f32 v{s}, {f32(1e-5)}, v{s}")
    rne(k, s, u)
    k(f"v_sqrt_f32 v{s}, v{s}")
    rne(k, s, u)
    k(f"v_rcp_f32 v{s}, v{s}")
    rne(k, mean, u)
    for i in range(8): k(f"v_sub_f32 v{d+i}, v{x+i}, v{mean}")
    pack8(k, r, d)
    unpack8(k, d, r)
    for i in range(8): k(f"v_mul_f32 v{d+i}, v{d+i}, v{s}")
    pack8(k, out, d)

def tok_addr(k, vq, vtok, va32, vrow, vaw, var, swave, t0, t1):
    k(f"v_lshrrev_b32 v{vq}, 3, v0")
    k(f"v_and_b32 v{vtok}, 7, v0")
    k(f"s_lshl_b32 s5, s2, 3")
    k(f"v_add_u32 v{t0}, s5, v{vtok}")
    k(f"v_mul_u32_u24 v{vrow}, 1152, v{t0}")
    k(f"v_lshl_add_u32 v{vrow}, v{vq}, 4, v{vrow}")
    k(f"s_lshr_b32 s5, s2, 2")
    k(f"s_mul_i32 s5, s5, 36864")
    k(f"v_and_b32 v{t0}, 31, v{t0}")
    k(f"v_lshlrev_b32 v{t0}, 4, v{t0}")
    k(f"v_lshl_add_u32 v{va32}, v{vq}, 9, v{t0}")
    k(f"v_add_u32 v{va32}, s5, v{va32}")
    k(f"v_mul_u32_u24 v{var}, 48, v{vtok}")
    k(f"s_lshl_b32 s5, s{swave}, 2")
    k(f"v_add_u32 v{vaw}, s5, v{var}")

def gen_k0():
    k = Kern()
    k("s_cmp_ge_u32 s2, 256")
    k("s_cbranch_scc1 K0_end")
    k("s_load_dwordx16 s[16:31], s[0:1], 0")
    k("s_load_dwordx2 s[32:33], s[0:1], 80")
    k("v_lshrrev_b32 v1, 6, v0")
    k("v_and_b32 v2, 63, v0")
    k("v_readfirstlane_b32 s3, v1")
    k("s_nop 3")
    k("s_lshl_b32 s4, s3, 8")
    k("s_add_u32 s4, s4, s2")
    tok_addr(k, 9, 10, 11, 12, 13, 14, 3, 4, 5)
    k("s_mov_b32 s46, 0x05040100")
    k("s_mov_b32 s47, 0x07060302")
    k("s_waitcnt lgkmcnt(0)")
    srd(k, 8, 32, WS_END)
    srd(k, 12, 16, ACT)
    srd(k, 36, 16, ACT)
    k("buffer_load_dwordx4 v[80:83], v12, s[12:15], 0 offen")
    k("s_mov_b32 s41, 1")
    k("s_mov_b32 s40, 0")
    k("v_mov_b32 v6, 0")
    k("v_mov_b32 v7, 0")
    k("v_mov_b32 v8, 0")
    k("s_cmp_lt_u32 s4, 243")
    k("s_cbranch_scc1 K0_wq")
    k("s_cmp_lt_u32 s4, 324")
    k("s_cbranch_scc1 K0_wo")
    k("s_cmp_lt_u32 s4, 972")
    k("s_cbranch_scc1 K0_w1")
    k("s_cmp_lt_u32 s4, 1620")
    k("s_cbranch_scc1 K0_w2")
    k("s_mov_b32 s41, 0")
    k("s_cmp_lt_u32 s4, 1629")
    k("s_cbranch_scc1 K0_b1")
    k("s_cmp_lt_u32 s4, 2048")
    k("s_cbranch_scc1 K0_ln")
    k("s_getpc_b64 s[44:45]")
    k.label("K0_pc")
    k("s_sub_u32 s44, s44, K0_pc-CODE_START")
    k("s_subb_u32 s45, s45, 0")
    k("s_lshr_b32 s5, s2, 3")
    k("s_and_b32 s5, s5, 31")
    k("s_mul_i32 s5, s5, PF_PER")
    k("v_lshlrev_b32 v3, 4, v2")
    k("v_add_u32 v3, s5, v3")
    k("s_mov_b32 s5, CODE_END-CODE_START-16")
    for i in range(4):
        k(f"v_min_u32 v4, s5, v3")
        k(f"global_load_dwordx4 v[{16+4*i}:{19+4*i}], v4, s[44:45]")
        k(f"v_add_u32 v3, 1024, v3")
    k("s_branch K0_ln")

    def blk(start, ncb, nblk, rs):
        k(f"s_sub_u32 s5, s4, {start}")
        k(f"s_lshl_b32 s5, s5, 6")
        k(f"v_add_u32 v3, s5, v2")
        vdivmod(k, 4, 5, 3, ncb, nblk - 1)
        k(f"v_mul_u32_u24 v6, {8*rs}, v4")
        k(f"v_lshl_add_u32 v6, v5, 4, v6")
        k(f"s_mov_b32 s40, {rs}")

    k.label("K0_wq")
    srd(k, 36, 18, 576 * 1728 * 2)
    blk(0, 216, 15552, 3456)
    k("v_lshrrev_b32 v16, 2, v4")
    k("v_mul_u32_u24 v16, 7168, v16")
    k("v_and_b32 v17, 3, v4")
    k("v_lshl_add_u32 v16, v17, 8, v16")
    k(f"v_add_u32 v16, {WS_WQ}, v16")
    for u in range(2):
        k(f"v_lshlrev_b32 v17, 1, v5")
        if u: k(f"v_add_u32 v17, 1, v17")
        vdivmod(k, 18, 19, 17, 144, 431)
        vdivmod(k, 20, 21, 19, 9, 143)
        k(f"v_mul_u32_u24 v18, 9, v18")
        k(f"v_add_u32 v18, v18, v21")
        k(f"v_mul_u32_u24 v20, {WQ_PER}, v20")
        k(f"v_lshrrev_b32 v21, 2, v18")
        k(f"v_lshl_add_u32 v20, v21, 10, v20")
        k(f"v_and_b32 v21, 3, v18")
        k(f"v_lshl_add_u32 v20, v21, 6, v20")
        k(f"v_add_u32 v{7+u}, v20, v16")
    k("s_branch K0_load")
    k.label("K0_wo")
    srd(k, 36, 20, 576 * 576 * 2)
    blk(243, 72, 5184, 1152)
    k("v_lshrrev_b32 v16, 2, v4")
    k("v_mul_u32_u24 v16, 6144, v16")
    k("v_and_b32 v17, 3, v4")
    k("v_lshl_add_u32 v16, v17, 8, v16")
    k(f"v_add_u32 v16, {WS_WO}, v16")
    k("v_lshrrev_b32 v17, 2, v5")
    vdivmod(k, 18, 19, 17, 3, 17)
    k(f"v_mul_u32_u24 v18, {WO_PER}, v18")
    k("v_lshl_add_u32 v18, v19, 11, v18")
    k("v_and_b32 v19, 3, v5")
    k("v_lshl_add_u32 v18, v19, 6, v18")
    k("v_add_u32 v7, v18, v16")
    k("v_add_u32 v8, 1024, v7")
    k("s_branch K0_load")
    k.label("K0_w1")
    srd(k, 36, 24, 576 * 4608 * 2)
    blk(324, 576, 41472, 9216)
    k("v_lshrrev_b32 v16, 1, v4")
    vdivmod(k, 17, 18, 16, 18, 35)
    vdivmod(k, 19, 20, 18, 6, 17)
    k("v_mul_u32_u24 v19, 36, v19")
    k("v_mul_u32_u24 v20, 3, v20")
    k("v_add_u32 v19, v19, v20")
    k("v_mul_u32_u24 v20, 18, v17")
    k("v_add_u32 v19, v19, v20")
    vdivmod(k, 21, 22, 5, 36, 575)
    k("v_lshrrev_b32 v23, 2, v22")
    vdivmod(k, 24, 25, 23, 3, 8)
    k("v_mul_u32_u24 v24, 108, v24")
    k("v_add3_u32 v19, v19, v24, v25")
    k(f"v_mul_u32_u24 v21, {W12_PER}, v21")
    k("v_lshl_add_u32 v21, v19, 10, v21")
    k("v_and_b32 v20, 1, v4")
    k("v_lshl_add_u32 v21, v20, 9, v21")
    k("v_bfe_u32 v20, v22, 1, 1")
    k("v_xor_b32 v20, v20, v17")
    k("v_lshl_add_u32 v21, v20, 8, v21")
    k("v_and_b32 v20, 1, v22")
    k("v_lshl_add_u32 v21, v20, 6, v21")
    k(f"v_add_u32 v7, {WS_W12}, v21")
    k("v_add_u32 v8, 128, v7")
    k("s_branch K0_load")
    k.label("K0_w2")
    srd(k, 36, 28, 576 * 4608 * 2)
    blk(972, 72, 41472, 1152)
    vdivmod(k, 16, 17, 4, 36, 575)
    k("v_lshrrev_b32 v18, 2, v17")
    vdivmod(k, 19, 20, 18, 3, 8)
    k("v_lshrrev_b32 v21, 2, v5")
    vdivmod(k, 22, 23, 21, 9, 17)
    vdivmod(k, 24, 25, 23, 3, 8)
    k("v_bfe_u32 v26, v17, 1, 1")
    k("v_xor_b32 v26, v26, v22")
    k("v_mul_u32_u24 v26, 3, v26")
    k("v_add_u32 v26, v26, v20")
    k("v_mul_u32_u24 v26, 3, v26")
    k("v_add_u32 v26, v26, v25")
    k("v_mul_u32_u24 v24, 3, v24")
    k("v_add3_u32 v24, v24, v19, 9")
    k("v_mul_u32_u24 v24, 36, v24")
    k("v_mul_u32_u24 v22, 18, v22")
    k("v_add3_u32 v26, v26, v24, v22")
    k(f"v_mul_u32_u24 v16, {W12_PER}, v16")
    k("v_lshl_add_u32 v16, v26, 10, v16")
    k("v_and_b32 v20, 1, v17")
    k("v_lshl_add_u32 v16, v20, 9, v16")
    k("v_bfe_u32 v20, v5, 1, 1")
    k("v_lshl_add_u32 v16, v20, 8, v16")
    k("v_and_b32 v20, 1, v5")
    k("v_lshl_add_u32 v16, v20, 6, v16")
    k(f"v_add_u32 v7, {WS_W12}, v16")
    k("v_add_u32 v8, 128, v7")
    k("s_branch K0_load")
    k.label("K0_b1")
    srd(k, 36, 26, 4608 * 2)
    k("s_sub_u32 s5, s4, 1620")
    k("s_lshl_b32 s5, s5, 6")
    k("v_add_u32 v3, s5, v2")
    k("v_lshlrev_b32 v4, 4, v3")
    k("buffer_load_dwordx4 v[16:19], v4, s[36:39], 0 offen")
    k("v_lshlrev_b32 v4, 5, v3")
    k(f"v_add_u32 v4, {WS_B1H}, v4")
    k("s_waitcnt vmcnt(0)")
    unpack8(k, 20, 16)
    for i in range(8): k(f"v_mul_f32 v{20+i}, 0.5, v{20+i}")
    k("buffer_store_dwordx4 v[20:23], v4, s[8:11], 0 offen")
    k("buffer_store_dwordx4 v[24:27], v4, s[8:11], 0 offen offset:16")
    k("s_branch K0_ln")
    k.label("K0_load")
    k("s_mov_b32 s42, 0")
    for i in range(8):
        k(f"buffer_load_dwordx4 v[{16+4*i}:{19+4*i}], v6, s[36:39], s42 offen")
        if i < 7: k("s_add_u32 s42, s42, s40")
    k("s_waitcnt vmcnt(8)")
    k("s_branch K0_ln2")
    k.label("K0_ln")
    k("s_waitcnt vmcnt(0)")
    k.label("K0_ln2")
    k(f"s_mov_b32 s5, {WS_XA}")
    k("buffer_store_dwordx4 v[80:83], v11, s[8:11], s5 offen")
    unpack8(k, 84, 80)
    layernorm(k, 84, 92, 96, 13, 14)
    k(f"buffer_store_dwordx4 v[92:95], v11, s[8:11], 0 offen offset:{WS_XN}")
    k("s_cmp_eq_u32 s41, 0")
    k("s_cbranch_scc1 K0_end")
    k("s_waitcnt vmcnt(2)")
    for col in range(8):
        c, hi = divmod(col, 2)
        for d in range(4):
            k(f"v_perm_b32 v{48+4*col+d}, v{16+4*(2*d+1)+c}, v{16+4*(2*d)+c}, s{46+hi}")
        u, r = divmod(col, 4)
        k(f"buffer_store_dwordx4 v[{48+4*col}:{51+4*col}], v{7+u}, s[8:11], 0 offen offset:{16*r}")
    k.label("K0_end")
    k("s_endpgm")
    return k, dict(vgpr=120, sgpr=64, grid=256, block=576, lds=1024)

def gen_k4(final):
    L = "K4b" if final else "K4a"
    k = Kern()
    k("s_cmp_ge_u32 s2, 256")
    k(f"s_cbranch_scc1 {L}_end")
    k("s_load_dwordx4 s[16:19], s[0:1], 56")
    k("s_load_dwordx2 s[32:33], s[0:1], 80")
    k("v_lshrrev_b32 v1, 6, v0")
    k("v_readfirstlane_b32 s3, v1")
    k("s_nop 3")
    tok_addr(k, 9, 10, 11, 12, 13, 14, 3, 4, 5)
    k("v_lshlrev_b32 v15, 4, v9")
    k("s_waitcnt lgkmcnt(0)")
    srd(k, 8, 32, WS_END)
    srd(k, 12, 16, 576 * 2)
    srd(k, 20, 18, ACT)
    k(f"s_mov_b32 s5, {WS_PART}")
    tags = []
    for p in range(16):
        tags.append(k.vmem(f"buffer_load_dwordx4 v[{16+4*p}:{19+4*p}], v11, s[8:11], s5 offen"))
        if p < 15: k(f"s_add_u32 s5, s5, {ACT}")
    k(f"s_mov_b32 s5, {WS_X1}")
    tx = k.vmem("buffer_load_dwordx4 v[80:83], v11, s[8:11], s5 offen")
    tb = k.vmem("buffer_load_dwordx4 v[84:87], v15, s[12:15], 0 offen")
    acc, t = 88, 96
    for p in range(16):
        k.wait(vm=tags[p])
        if p == 0: unpack8(k, acc, 16)
        else:
            unpack8(k, t, 16 + 4 * p)
            for i in range(8): k(f"v_add_f32 v{acc+i}, v{acc+i}, v{t+i}")
    pack8(k, 16, acc); unpack8(k, acc, 16)
    k.wait(vm=[tx, tb])
    unpack8(k, t, 84)
    for i in range(8): k(f"v_add_f32 v{acc+i}, v{acc+i}, v{t+i}")
    pack8(k, 16, acc); unpack8(k, acc, 16)
    unpack8(k, t, 80)
    for i in range(8): k(f"v_add_f32 v{acc+i}, v{acc+i}, v{t+i}")
    pack8(k, 16, acc)
    if final:
        k("buffer_store_dwordx4 v[16:19], v12, s[20:23], 0 offen")
    else:
        k(f"s_mov_b32 s5, {WS_XA}")
        k("buffer_store_dwordx4 v[16:19], v11, s[8:11], s5 offen")
        unpack8(k, acc, 16)
        layernorm(k, acc, 20, 24, 13, 14)
        k(f"buffer_store_dwordx4 v[20:23], v11, s[8:11], 0 offen offset:{WS_XN}")
    k.label(f"{L}_end")
    k("s_endpgm")
    return k, dict(vgpr=104, sgpr=48, grid=256, block=576, lds=1024)

from gen2 import gen_k1, gen_k2, gen_k3

def build(launch_order=None, out=None):
    kernels = {
        "k0_kernel": gen_k0(),
        "k1_kernel": gen_k1(),
        "k2_kernel": gen_k2(),
        "k3_kernel": gen_k3(),
        "k4a_kernel": gen_k4(False),
        "k4b_kernel": gen_k4(True),
    }
    order = launch_order or ["k0_kernel", "k1_kernel", "k2_kernel", "k3_kernel", "k4a_kernel",
                             "k1_kernel", "k2_kernel", "k3_kernel", "k4b_kernel"]
    hdr = open("cdna_kernels/" + NAME + ".s.ref").read().split("\n")
    lines = [l for l in hdr[:12] if l.startswith(";") and "@launch" not in l]
    for n in order:
        c = kernels[n][1]
        lines.append(f"; @launch kernel={n} grid=({c['grid']},1,1) block=({c['block']},1,1) lds={c['lds']}")
    lines.append('.amdgcn_target "amdgcn-amd-amdhsa--gfx950"')
    lines.append(".text")
    lines.append(".p2align 8")
    lines.append("CODE_START:")
    for n, (k, c) in kernels.items():
        lines += [f".globl {n}", ".p2align 8", f".type {n},@function", f"{n}:", k.finish()]
        print(f"{n}: {len(k.ins)} instrs, {k.nnop} nops inserted", file=sys.stderr)
    lines.append(".p2align 4")
    lines.append("CODE_END:")
    lines.append(".set PF_PER, (((CODE_END-CODE_START)+32*1024-1)/(32*1024))*1024")
    lines.append('.section .rodata,"a"')
    for n, (k, c) in kernels.items():
        vg = c['vgpr']
        lines += [".p2align 6", f".amdhsa_kernel {n}",
                  f"  .amdhsa_next_free_vgpr {vg}",
                  f"  .amdhsa_next_free_sgpr {c['sgpr']}",
                  f"  .amdhsa_accum_offset {min(256, (vg + 3) // 4 * 4)}",
                  "  .amdhsa_group_segment_fixed_size 0",
                  "  .amdhsa_kernarg_size 88",
                  "  .amdhsa_user_sgpr_count 2",
                  "  .amdhsa_user_sgpr_kernarg_segment_ptr 1",
                  "  .amdhsa_system_sgpr_workgroup_id_x 1",
                  ".end_amdhsa_kernel"]
    text = "\n".join(lines) + "\n"
    open(out or ("cdna_kernels/" + NAME + ".s"), "w").write(text)

if __name__ == "__main__":
    build(out=sys.argv[1] if len(sys.argv) > 1 else None)
```
